```python
import torch

def _softmax(x, axis=-1):
    return torch.softmax(x, dim=axis)
def _gelu(x):
    return torch.nn.functional.gelu(x, approximate="tanh")
def _silu(x):
    return torch.nn.functional.silu(x)
def _sigmoid(x):
    return torch.sigmoid(x)
def _layernorm(x, axis=-1, eps=1e-5):
    m = x.mean(dim=axis, keepdim=True)
    v = x.var(dim=axis, keepdim=True, unbiased=False)
    return (x - m) / torch.sqrt(v + eps)
def _scatter_add(tgt, idx, src, axis=0):
    return tgt.clone().index_add_(axis, idx, src)
def _segment_sum(src, seg, n):
    out = torch.zeros((n,) + src.shape[1:], dtype=src.dtype)
    return out.index_add_(0, seg, src)
def _pad(x, pw):
    flat = tuple(v for pair in reversed(pw) for v in pair)
    return torch.nn.functional.pad(x, flat)

kernel_name = 'standalone__edm_precond__diffusion'

def setup_inputs():

    _w = (lambda a: (lambda t: t.to(torch.bfloat16) if t.is_floating_point() else t)(torch.as_tensor(a)))
    B, C, HW = 2, 320, 128
    return {
        "x": _w((lambda *s: torch.randn(*s, dtype=torch.bfloat16) * 0.2)(B, C, HW, HW)),
        "sigma": _w((lambda _x: torch.exp(torch.as_tensor(_x)))((lambda *s: torch.randn(*s, dtype=torch.bfloat16) * 3.2)(B))),
        "w_in": _w((lambda *s: torch.randn(*s, dtype=torch.bfloat16) * 3.2)(C, C) * (C ** -0.5)),
        "w_emb": _w((lambda *s: torch.randn(*s, dtype=torch.bfloat16) * 3.2)(1, C)),
        "w_out": _w((lambda *s: torch.randn(*s, dtype=torch.bfloat16) * 3.2)(C, C) * (C ** -0.5)),
    }

def reference(x, sigma, w_in, w_emb, w_out):
    B, C, H, W = x.shape
    sigma_data = 0.5
    s = sigma.reshape(B, 1, 1, 1)
    denom = s * s + sigma_data * sigma_data
    c_skip = (sigma_data * sigma_data) / denom
    c_out  = s * sigma_data / torch.sqrt(denom)
    c_in   = 1.0 / torch.sqrt(denom)
    c_noise = 0.25 * torch.log(sigma).reshape(B, 1)
    h = torch.einsum("bchw,cd->bdhw", c_in * x, w_in)
    h = h + (c_noise @ w_emb).reshape(B, C, 1, 1)
    h = _silu(h)
    Fx = torch.einsum("bchw,cd->bdhw", h, w_out)
    return c_skip * x + c_out * Fx
```

```python
import sys
KN = "standalone__edm_precond__diffusion_kernel"
def wrap(body, nthreads=512, grid=256, lds=163840, vgpr=256, accum=256):
    return f"""; @launch grid=({grid},1,1) block=({nthreads},1,1) lds={lds}
.amdgcn_target "amdgcn-amd-amdhsa--gfx950"
.text
.globl {KN}
.p2align 8
.type {KN},@function
{KN}:
{body}
s_endpgm
.section .rodata,"a"
.p2align 6
.amdhsa_kernel {KN}
  .amdhsa_next_free_vgpr {vgpr}
  .amdhsa_next_free_sgpr 102
  .amdhsa_accum_offset {accum}
  .amdhsa_group_segment_fixed_size 0
  .amdhsa_kernarg_size 64
  .amdhsa_user_sgpr_count 2
  .amdhsa_user_sgpr_kernarg_segment_ptr 1
  .amdhsa_system_sgpr_workgroup_id_x 1
.end_amdhsa_kernel
"""

PRO = """
  s_load_dwordx2 s[4:5], s[0:1], 56
  s_load_dwordx2 s[20:21], s[0:1], 16
  s_load_dwordx2 s[22:23], s[0:1], 0
  v_lshrrev_b32 v1, 6, v0
  s_nop 1
  v_readfirstlane_b32 s6, v1
  v_and_b32 v2, 63, v0
  s_mov_b32 s30, 0x3f8ccccd
  s_mov_b32 s31, 0x3dcccccd
"""
def init_regs(lo, hi):
    return "".join(f"  v_cvt_f32_u32 v{i}, v2\n  v_mul_f32 v{i}, 0x3c23d70a, v{i}\n" for i in range(lo, hi))
START = """
  s_waitcnt lgkmcnt(0)
  s_barrier
  s_memtime s[8:9]
  s_memrealtime s[12:13]
  s_waitcnt lgkmcnt(0)
"""
END = """
  s_memtime s[10:11]
  s_memrealtime s[14:15]
  s_waitcnt lgkmcnt(0)
  s_sub_u32 s10, s10, s8
  s_sub_u32 s14, s14, s12
  s_getreg_b32 s16, hwreg(HW_REG_HW_ID)
  s_lshr_b32 s16, s16, 4
  s_and_b32 s16, s16, 3
  s_lshl_b32 s17, s14, 8
  s_or_b32 s16, s16, s17
  ; ws[(wg*8+wave)*8] = {cycles, simd | rt<<8}
  s_lshl_b32 s17, s2, 3
  s_add_u32 s17, s17, s6
  s_lshl_b32 s17, s17, 3
  v_mov_b32 v4, s17
  v_mov_b32 v6, s10
  v_mov_b32 v7, s16
  v_cmp_eq_u32 vcc, 0, v2
  s_and_saveexec_b64 s[18:19], vcc
  global_store_dwordx2 v4, v[6:7], s[4:5]
  s_waitcnt vmcnt(0)
"""
def loop(name, body, n):
    return f"""
  s_mov_b32 s7, {n}
{name}:
{body}
  s_sub_u32 s7, s7, 1
  s_cmp_lg_u32 s7, 0
  s_cbranch_scc1 {name}
"""
def fma_body(n=64): return "".join(f"  v_fma_f32 v{16+i%32}, v{16+i%32}, s30, v{48+i%16}\n" for i in range(n))
def exp_body(n=64): return "".join(f"  v_exp_f32 v{16+i%32}, v{48+i%16}\n" for i in range(n))
def silu_ops(src, tmp, dst):
    ops = []
    for i in range(16): ops.append(f"  v_fma_f32 v{tmp+i}, v{src+i}, s30, v{src+16+i}\n")
    for i in range(16): ops.append(f"  v_exp_f32 v{tmp+16+i}, v{tmp+i}\n")
    for i in range(16): ops.append(f"  v_fma_f32 v{tmp+16+i}, v{tmp+16+i}, s31, s31\n")
    for i in range(16): ops.append(f"  v_rcp_f32 v{tmp+16+i}, v{tmp+16+i}\n")
    for i in range(16): ops.append(f"  v_mul_f32 v{tmp+i}, v{tmp+i}, v{tmp+16+i}\n")
    for i in range(8): ops.append(f"  v_cvt_pk_bf16_f32 v{dst+i}, v{tmp+2*i}, v{tmp+2*i+1}\n")
    return ops
def silu_mixed(src, tmp, dst):
    st = [[f"  v_fma_f32 v{tmp+i}, v{src+i}, s30, v{src+16+i}\n" for i in range(16)],
          [f"  v_exp_f32 v{tmp+16+i}, v{tmp+i}\n" for i in range(16)],
          [f"  v_fma_f32 v{tmp+16+i}, v{tmp+16+i}, s31, s31\n" for i in range(16)],
          [f"  v_rcp_f32 v{tmp+16+i}, v{tmp+16+i}\n" for i in range(16)],
          [f"  v_mul_f32 v{tmp+i}, v{tmp+i}, v{tmp+16+i}\n" for i in range(16)],
          [f"  v_cvt_pk_bf16_f32 v{dst+i//2}, v{tmp+i-1}, v{tmp+i}\n" if i % 2 else "" for i in range(16)]]
    ops = []
    for t in range(16 + 2 * 5):
        for s in range(6):
            i = t - 2 * s
            if 0 <= i < 16 and st[s][i]: ops.append(st[s][i])
    return ops
def mfma(acc, a=100, b=104): return f"  v_mfma_f32_32x32x16_bf16 v[{acc}:{acc+15}], v[{a}:{a+3}], v[{b}:{b+3}], v[{acc}:{acc+15}]\n"
def mfma16(acc, a=100, b=104): return f"  v_mfma_f32_16x16x32_bf16 v[{acc}:{acc+3}], v[{a}:{a+3}], v[{b}:{b+3}], v[{acc}:{acc+3}]\n"
def mfma_body(n=16): return "".join(mfma(128 + 16 * (i % 5)) for i in range(n))
def mfma16_body(n=32): return "".join(mfma16(128 + 4 * (i % 20)) for i in range(n))
def interleave(ms, vs):
    out = []; nv = len(vs); nm = len(ms); j = 0
    for i, m in enumerate(ms):
        out.append(m)
        k = (i + 1) * nv // nm
        out += vs[j:k]; j = k
    return "".join(out)

def roles(bodyA, nA, bodyB, nB):
    return f"""
  s_cmp_ge_u32 s6, 4
  s_cbranch_scc1 ROLEB
{loop('LA', bodyA, nA)}
  s_branch DONE
ROLEB:
{loop('LB', bodyB, nB)}
DONE:
"""
tests = {}
I = init_regs(8, 250)
tests['fma4'] = wrap(PRO + I + START + loop('L', fma_body(), 50) + END, 256)
tests['fma8'] = wrap(PRO + I + START + loop('L', fma_body(), 50) + END, 512)
tests['exp4'] = wrap(PRO + I + START + loop('L', exp_body(), 50) + END, 256)
tests['exp8'] = wrap(PRO + I + START + loop('L', exp_body(), 50) + END, 512)
tests['silu4'] = wrap(PRO + I + START + loop('L', "".join(silu_ops(16, 48, 80)), 50) + END, 256)
tests['silu8'] = wrap(PRO + I + START + loop('L', "".join(silu_ops(16, 48, 80)), 50) + END, 512)
tests['silum4'] = wrap(PRO + I + START + loop('L', "".join(silu_mixed(16, 48, 80)), 50) + END, 256)
tests['silum8'] = wrap(PRO + I + START + loop('L', "".join(silu_mixed(16, 48, 80)), 50) + END, 512)
tests['mfma4'] = wrap(PRO + I + START + loop('L', mfma_body(), 50) + END, 256)
tests['mfma8'] = wrap(PRO + I + START + loop('L', mfma_body(), 50) + END, 512)
tests['mfma16_4'] = wrap(PRO + I + START + loop('L', mfma16_body(), 50) + END, 256)
tests['mfma_silu'] = wrap(PRO + I + START + roles(mfma_body(), 50, "".join(silu_mixed(16, 48, 80)), 50) + END, 512)
tests['silu_mfma'] = wrap(PRO + I + START + roles("".join(silu_mixed(16, 48, 80)), 50, mfma_body(), 50) + END, 512)
tests['mfma16_silu'] = wrap(PRO + I + START + roles(mfma16_body(), 50, "".join(silu_mixed(16, 48, 80)), 50) + END, 512)
tests['fma_exp'] = wrap(PRO + I + START + roles(fma_body(), 50, exp_body(), 50) + END, 512)
for nm in (8, 12, 16):
    tests[f'mix{nm}_8'] = wrap(PRO + I + START + loop('L', interleave([mfma(128 + 16 * (i % 5)) for i in range(nm)], silu_mixed(16, 48, 80)), 50) + END, 512)
    tests[f'mix{nm}_4'] = wrap(PRO + I + START + loop('L', interleave([mfma(128 + 16 * (i % 5)) for i in range(nm)], silu_mixed(16, 48, 80)), 50) + END, 256)
if __name__ == "__main__":
    for k, v in tests.items():
        open(f"t_{k}.s", "w").write(v)
    print(" ".join(f"bench/t_{k}.s" for k in tests))
```

```python
from mbgen import *
NSEG = 16
def series(body, nthreads, niter, zero=False, ldsfill=True):
    s = PRO
    s += "  s_waitcnt lgkmcnt(0)\n  v_lshlrev_b32 v3, 4, v0\n"
    for i in range(15):
        s += f"  v_add_u32 v4, {i*8192}, v3\n  global_load_dwordx4 v[{8+4*i}:{11+4*i}], v4, s[20:21]\n"
        s += f"  global_load_dwordx4 v[{68+4*i}:{71+4*i}], v4, s[22:23]\n"
    s += "  s_waitcnt vmcnt(0)\n"
    if ldsfill:
        for i in range(15):
            s += f"  v_add_u32 v4, {i*8192}, v3\n  ds_write_b128 v4, v[{8+4*i}:{11+4*i}]\n"
    if zero:
        for i in range(8, 128): s += f"  v_mov_b32 v{i}, 0\n"
    for i in range(128, 256): s += f"  v_mov_b32 v{i}, 0\n"
    s += "  v_lshlrev_b32 v5, 3, v2\n  v_lshlrev_b32 v1, 4, v2\n  s_waitcnt lgkmcnt(0)\n  s_barrier\n"
    for seg in range(NSEG):
        s += f"  s_memtime s[{36+4*seg}:{37+4*seg}]\n  s_memrealtime s[{38+4*seg}:{39+4*seg}]\n"
        if seg < NSEG - 1:
            s += loop(f"L{seg}", body, niter)
    s += "  s_waitcnt lgkmcnt(0)\n  s_barrier\n"
    s += f"  s_memtime s[{36+4*(NSEG-1)}:{37+4*(NSEG-1)}]\n  s_memrealtime s[{38+4*(NSEG-1)}:{39+4*(NSEG-1)}]\n  s_waitcnt lgkmcnt(0)\n"
    s += f"""
  s_cmp_lg_u32 s6, 0
  s_cbranch_scc1 FIN
  s_mul_i32 s17, s2, {NSEG*8}
  v_mov_b32 v4, s17
  v_cmp_eq_u32 vcc, 0, v2
  s_and_saveexec_b64 s[18:19], vcc
"""
    for seg in range(NSEG):
        s += f"  v_mov_b32 v6, s{36+4*seg}\n  v_mov_b32 v7, s{38+4*seg}\n  global_store_dwordx2 v4, v[6:7], s[4:5] offset:{seg*8}\n  s_nop 1\n"
    s += "  s_waitcnt vmcnt(0)\nFIN:\n"
    return wrap(s, nthreads)
W = lambda i: 8 + 4 * (i % 15)
X = lambda i: 68 + 4 * (i % 15)
tests = {}
tests['p32_chain'] = series("".join(mfma(128, W(i), X(i)) for i in range(15)), 256, 2)
tests['p32_rot5_sameB'] = series("".join(mfma(128 + 16 * (i % 5), W(i), X(i // 5)) for i in range(15)), 256, 2)
tests['p32_rot5_diff'] = series("".join(mfma(128 + 16 * (i % 5), W(i), X(i)) for i in range(15)), 256, 2)
tests['p32_2acc_sameA'] = series("".join(mfma(128 + 16 * (i % 2), W(i // 2), X(i)) for i in range(30)), 256, 1)
tests['p32_zero'] = series("".join(mfma(128 + 16 * (i % 5), W(i), X(i)) for i in range(15)), 256, 2, zero=True)
tests['p16_chain'] = series("".join(mfma16(128, W(i), X(i)) for i in range(30)), 256, 2)
tests['p16_rot20'] = series("".join(mfma16(128 + 4 * (i % 20), W(i % 5 + 5 * (i // 20)), X((i // 5))) for i in range(60)), 256, 1)
tests['p16_rot4_sameA'] = series("".join(mfma16(128 + 4 * (i % 4), W(i // 4), X(i)) for i in range(60)), 256, 1)
def with_tr(n, accf, nrd, b128=False):
    s = ""
    for i in range(n):
        d = W(i + 5)
        if i % nrd[1] < nrd[0]:
            if b128:
                s += f"  ds_read_b128 v[{d}:{d+3}], v1 offset:{(i*1024) % 65536}\n"
            else:
                s += f"  ds_read_b64_tr_b16 v[{d}:{d+1}], v5 offset:{(i*1024) % 65536}\n  ds_read_b64_tr_b16 v[{d+2}:{d+3}], v5 offset:{(i*1024+512) % 65536}\n"
        s += f"  s_waitcnt lgkmcnt({4 if b128 else 8})\n"
        s += mfma(accf(i), W(i), X(i // 5))
    return s
tests['p32_tr1'] = series(with_tr(15, lambda i: 128 + 16 * (i % 5), (1, 1)), 256, 2)
tests['p32_tr1_8w'] = series(with_tr(15, lambda i: 128 + 16 * (i % 5), (1, 1)), 512, 1)
tests['p32_b128_8w'] = series(with_tr(15, lambda i: 128 + 16 * (i % 5), (1, 1), True), 512, 1)
tests['p32_trhalf'] = series(with_tr(30, lambda i: 128 + 16 * (i % 5), (1, 2)), 256, 1)
if __name__ == "__main__":
    for k, v in tests.items():
        open(f"t_{k}.s", "w").write(v)
    print(" ".join(f"bench/t_{k}.s" for k in tests))
```

```python
import re, sys
from mbgen import wrap, KN
def kern(progs, pstride=128, xfl=" nt", pfl="", by="wave", m1=0, rot=0, wfl=""):
    s = f"""
  s_memrealtime s[90:91]
  s_load_dwordx4 s[4:7], s[0:1], 0
  s_load_dwordx4 s[8:11], s[0:1], 16
  s_load_dwordx4 s[12:15], s[0:1], 32
  s_load_dwordx2 s[58:59], s[0:1], 56
  s_getpc_b64 s[56:57]
L_pc:
  v_lshlrev_b32 v20, 6, v0
  v_min_u32 v20, L_end-L_pc, v20
  global_load_dword v21, v20, s[56:57]
  v_lshrrev_b32 v101, 6, v0
  v_and_b32 v100, 63, v0
  v_readfirstlane_b32 s36, v101
  v_lshrrev_b32 v102, 3, v0
  v_and_b32 v103, 6, v102
  v_xor_b32 v103, v103, v0
  v_and_b32 v103, 7, v103
  v_lshlrev_b32 v103, 4, v103
  v_lshl_add_u32 v29, v102, 15, v103
  v_lshrrev_b32 v104, 3, v100
  v_lshl_add_u32 v30, v104, 15, v103
  v_mul_u32_u24 v104, 640, v104
  v_add_u32 v31, v104, v103
  v_lshl_add_u32 v105, v101, 7, v103
  v_add_u32 v16, v104, v105
  v_mul_u32_u24 v102, 640, v102
  v_add_u32 v17, 4096, v16
  v_add_u32 v18, 8192, v16
  v_add_u32 v19, 12288, v16
  v_add_u32 v103, 512, v103
  v_add_u32 v28, v102, v103
  v_lshrrev_b32 v102, {1 if pstride == 128 else 2}, v0
  v_and_b32 v103, {1 if pstride == 128 else 3}, v0
  v_lshlrev_b32 v103, {7 if pstride == 128 else 6}, v103
  v_lshl_add_u32 v27, v102, 15, v103
  v_mov_b32 v40, 0
  v_mov_b32 v41, 0
  s_lshr_b32 s39, s2, 7
  s_and_b32 s41, s2, 127
  s_mul_i32 s40, s39, 10485760
  s_lshl_b32 s41, s41, 8
  s_add_u32 s40, s40, s41
  s_sub_u32 s18, 20971520, s40
  s_lshl_b32 s37, s36, 12
  s_mov_b32 s19, 0x20000
  s_mov_b32 s23, 0x20000
  s_mov_b32 s22, 204800
  s_mov_b32 s27, 0x20000
  s_mov_b32 s26, 204800
  s_lshr_b32 s44, s2, 3
  s_lshl2_add_u32 s44, s44, s36
  s_mov_b32 m0, s37
  s_waitcnt lgkmcnt(0)
  s_add_u32 s16, s4, s40
  s_addc_u32 s17, s5, 0
  s_mov_b32 s20, s8
  s_mov_b32 s21, s9
  s_mov_b32 s24, s12
  s_mov_b32 s25, s13
"""
    if len(progs) > 1: s += ("  s_cmp_eq_u32 s36, 3\n" if by == "wave" else "  s_bitcmp1_b32 s2, 3\n") + "  s_cbranch_scc1 L_alt\n"
    if m1: s = s.replace("  s_add_u32 s40, s40, s41\n", "  s_lshl_b32 s40, s2, 7\n")
    ns = 0
    if rot:
        s += "  s_lshr_b32 s46, s2, 3\n  s_mul_i32 s45, s46, 52429\n  s_lshr_b32 s45, s45, 19\n  s_mul_i32 s45, s45, 10\n  s_sub_u32 s46, s46, s45\n"
        for j in range(10): s += f"  s_mul_i32 s{64+j}, s46, 20480\n  s_lshl_b32 s{74+j}, s46, 20\n  s_add_u32 s46, s46, 1\n  s_cmp_eq_u32 s46, 10\n  s_cselect_b32 s46, 0, s46\n"
    for pi, prog in enumerate(progs):
        if pi: s += "  s_branch L_fin\nL_alt:\n"
        c = dict(a=0, b=0, P=0, L=0, f=0, X=0, W=0); k = 0
        for tok in re.findall(r"V\d+|s\d+|.", prog):
            if tok in 'ab' and rot:
                s += f"  s_add_u32 s43, s{74 + c[tok]}, {128 if tok == 'b' else 0}\n  buffer_load_dwordx4 v29, s[16:19], s43 offen{xfl} lds\n"
            elif tok in 'ab':
                s += f"  s_mov_b32 s43, {(c[tok] << 20) + ((10485760 if m1 else 128) if tok == 'b' else 0)}\n  buffer_load_dwordx4 v29, s[16:19], s43 offen{xfl} lds\n"
            elif tok == 'X':
                u = c['X']; s += f"  s_mov_b32 s43, {((u // 8) << 20) + ((u % 4) << 18)}\n  buffer_load_dwordx4 v30, s[16:19], s43 offen{' offset:128' if (u // 4) % 2 else ''}{xfl} lds\n"
            elif tok == 'W':
                u = c['W']; sr = "s[20:23]" if u < 67 else "s[24:27]"; u %= 67
                s += f"  s_add_u32 s43, s36, {3 * u}\n  s_min_u32 s43, s43, 199\n  s_mul_i32 s45, s43, 52429\n  s_lshr_b32 s45, s45, 18\n  s_mul_i32 s45, s45, {5120 - 640}\n  s_lshl_b32 s43, s43, 7\n  s_add_u32 s43, s43, s45\n  buffer_load_dwordx4 v31, {sr}, s43 offen lds\n"
            elif tok == 'P':
                u = c['P']; s += f"  s_mov_b32 s43, {f's{64 + u % 10}' if rot else (u % 10) * 20480}\n"
                for i in range(4): s += f"  buffer_load_dwordx4 v{16 + i}, {'s[20:23]' if u < 10 else 's[24:27]'}, s43 offen offset:{1024 * i}{wfl} lds\n"
            elif tok == 'L':
                u = c['L']; s += f"  s_mov_b32 s43, {f's{64 + u % 10}' if rot else (u % 10) * 20480}\n  buffer_load_dwordx4 v28, {'s[20:23]' if u < 10 else 's[24:27]'}, s43 offen{wfl} lds\n"
            elif tok in 'wu':
                for srd, lo in ((("s[20:23]", 40960),) if tok == 'w' else (("s[24:27]", 0),)):
                    n = -(-(204800 - lo) // (128 * 64))
                    s += f"  v_min_u32 v22, {n - 1}, v100\n  v_lshlrev_b32 v22, 6, v22\n  s_mul_i32 s45, s44, {64 * n}\n  s_add_u32 s45, s45, {lo}\n  s_min_u32 s45, s45, {204800 - 64 * n}\n  buffer_load_dword v23, v22, {srd}, s45 offen\n"
            elif tok == 'f':
                rows = 128 if pstride == 128 else 64
                s += f"  s_mov_b32 s43, {min(c['f'] * rows, 320 - rows) << 15}\n  buffer_load_dword v24, v27, s[16:19], s43 offen{pfl}\n"
            elif tok[0] == 'V': s += f"  s_waitcnt vmcnt({tok[1:]})\n"
            elif tok[0] == 's': s += f"  s_sleep {tok[1:]}\n"
            elif tok == '|':
                s += f"  s_memrealtime s[52:53]\n  s_waitcnt lgkmcnt(0)\n  v_writelane_b32 v40, s52, {k}\n"; k += 1
            if tok in c: c[tok] += 1
        ns = max(ns, k)
    s += """L_fin:
  s_waitcnt vmcnt(0)
  s_barrier
  v_writelane_b32 v40, s90, 63
  s_lshl2_add_u32 s43, s2, s36
  s_lshl_b32 s43, s43, 9
  v_lshlrev_b32 v0, 3, v100
  v_add_u32 v0, s43, v0
  global_store_dwordx2 v0, v[40:41], s[58:59]
L_end:
"""
    return f"; N {ns}\n" + wrap(s, 256, 256, 163840, 128, 128)
def write(T, pre):
    for k, v in T.items(): open(f"mb/{pre}_{k}.s", "w").write(v)
    print(" ".join(f"mb/{pre}_{k}.s" for k in T)); print(", ".join(f'"mb/{pre}_{k}.s"' for k in T))
if __name__ == "__main__":
    g = "abPL|"
    T = {
     'mix': kern(["|abPLwu|" + g * 9 + "PLPL|" * 5 + "V0|"]),
     'mixnw': kern(["|abPL|" + g * 9 + "PLPL|" * 5 + "V0|"]),
     'wonly': kern(["|PLwu|" + "PL|" * 9 + "PLPL|" * 5 + "V0|"]),
     'xonly': kern(["|" + "ab|" * 10 + "V16|V12|V8|V4|V0|"]),
     'split': kern(["|WWWWWWWwu|" + "WWWWWWW|WWWWWW|WWWWWWW|" * 3 + ("W" * 13 + "|") * 5 + "WWV0|", "|XXXXXXXXwu|" + "XXXXXXXX|" * 9 + "V32|V24|V16|V8|V0|V0|"]),
     'pf128': kern(["|abPLwufff|" + g * 9 + "PLPL|" * 5 + "V0|"]),
     'pf64': kern(["|abPLwufffff|" + g * 9 + "PLPL|" * 5 + "V0|"], 64),
     'pf128b': kern(["|abPLwuf|abPL|abPLf|abPL|abPLf|" + g * 5 + "PLPL|" * 5 + "V0|"]),
    }
    write(T, "c")
```

```python
from mbgen45 import *
X = "|" + "a" * 10 + "w" + "L" * 7 + "V8|" + "LLLPP" + "V8|" + "PPV8|V0|"
def W(n, w="w"): return "|" + "LLLL" + w + "L" * 6 + "P" * n + "a" * 8 + "V8|" + "aaPPV13|" + "V8|V0|"
T = {f'w{n}': kern([W(n), X], by="wg", rot=1) for n in (1, 2, 3, 4, 5)}
T['r3'] = kern([X, W(3)], by="wg", rot=1)
write(T, "j")
```

```python
from mbgen import *
from mbgen5 import silu_v
tests = {}
I = init_regs(8, 250) + "".join(f"  v_accvgpr_write_b32 a{i}, v{8+i%200}\n" for i in range(256)) + """  v_lshlrev_b32 v5, 3, v2
  v_lshlrev_b32 v1, 4, v2
  v_lshlrev_b32 v3, 4, v0
  s_waitcnt lgkmcnt(0)
  s_mov_b32 s24, s20
  s_mov_b32 s25, s21
  s_mov_b32 s26, 204800
  s_mov_b32 s27, 0x20000
  s_lshl_b32 s37, s6, 10
  s_add_u32 s37, s37, 65536
  s_mov_b32 m0, s37
"""
sv = silu_v(16, 48, 80) + silu_v(32, 64, 88)
def m16(i): return f"  v_mfma_f32_16x16x32_bf16 v[{128+4*(i%20)}:{131+4*(i%20)}], a[{4*(i%50)}:{4*(i%50)+3}], v[{208+4*((i//5)%4)}:{211+4*((i//5)%4)}], v[{128+4*(i%20)}:{131+4*(i%20)}]\n"
def m32(i): return f"  v_mfma_f32_32x32x16_bf16 v[{128+16*(i%4)}:{143+16*(i%4)}], v[{208+4*((i//2)%4)}:{211+4*((i//2)%4)}], a[{4*(i%50)}:{4*(i%50)+3}], v[{128+16*(i%4)}:{143+16*(i%4)}]\n"
def merge(*ls):
    items = []
    for li, l in enumerate(ls):
        for j, x in enumerate(l): items.append(((j + 0.5 * (li > 0)) / len(l), li, x))
    items.sort(key=lambda t: (t[0], t[1]))
    return "".join(t[2] for t in items)
def rdtr(n): return [f"  ds_read_b64_tr_b16 a[{200+2*(i%24)}:{201+2*(i%24)}], v5 offset:{(i*512)%65536}\n" for i in range(n)]
def rd128(n): return [f"  ds_read_b128 v[{224+4*(i%6)}:{227+4*(i%6)}], v1 offset:{(i*1024)%65536}\n" for i in range(n)]
def salu(n): return [f"  s_add_u32 s{40+i%4}, s{40+i%4}, 3\n" for i in range(n)]
def wt(n): return [f"  s_waitcnt lgkmcnt(15)\n" for i in range(n)]
def wr(n): return [f"  ds_write_b128 v1, v[{96+4*(i%3)}:{99+4*(i%3)}] offset:{(i*1024)%32768}\n" for i in range(n)]
def wr64(n): return [f"  ds_write_b64 v5, v[{96+2*(i%3)}:{97+2*(i%3)}] offset:{(i*512)%32768}\n" for i in range(n)]
def dma(n): return [f"  s_add_u32 m0, s37, {(d % 8) * 4096}\n  buffer_load_dwordx4 v3, s[24:27], 0 offen offset:{(d%4)*1024} lds\n" for d in range(n)]
def dma0(n): return [f"  buffer_load_dwordx4 v3, s[24:27], 0 offen offset:{(d%4)*1024} lds\n" for d in range(n)]
def T(name, *ls, tail="  s_waitcnt lgkmcnt(6) vmcnt(8)\n"):
    ls = [l for l in ls if l]
    tests[name] = wrap(PRO + I + START + loop('L', merge(*ls) + tail, 25) + "  s_waitcnt vmcnt(0) lgkmcnt(0)\n" + END, 256, 256, 163840, 512, 256)
M16 = lambda n: [m16(i) for i in range(n)]
M32 = lambda n: [m32(i) for i in range(n)]
T('silu', sv)
for n in (20, 40, 60, 80, 120): T(f's_m16_{n}', M16(n), sv)
for n in (12, 20, 32, 40): T(f's_m32_{n}', M32(n), sv)
T('m16_80', M16(80)); T('m32_40', M32(40))
T('s_rdtr40', sv, rdtr(40)); T('s_rd128_24', sv, rd128(24)); T('s_salu40', sv, salu(40)); T('s_wait40', sv, wt(40))
T('s_wr12', sv, wr(12)); T('s_wr64_12', sv, wr64(12)); T('s_dma8', sv, dma(8)); T('s_dma0_8', sv, dma0(8))
T('s_m32_20_rd40', M32(20), sv, rdtr(40)); T('s_m32_20_salu40', M32(20), sv, salu(40)); T('s_m32_20_wr12', M32(20), sv, wr(12)); T('s_m32_20_dma8', M32(20), sv, dma(8))
T('s_m16_40_rd40', M16(40), sv, rdtr(40))
T('m16_80_rd72', M16(80), rdtr(72)); T('m16_80_rd104_dma20', M16(80), rdtr(52), dma(14))
T('m32_40_rd128_40', M32(40), rd128(40))
for k, v in tests.items(): open(f"u_{k}.s", "w").write(v)
print(" ".join(f"mb/u_{k}.s" for k in tests))
print(", ".join(f'"mb/u_{k}.s"' for k in tests))
```

```python
from mbgen import *
tests = {}
I = init_regs(8, 250) + "  s_mov_b32 s32, s30\n  s_mov_b32 s33, s30\n"
def rep(f, n=256): return "".join(f(i) for i in range(n))
ops = {
 'mulvv': lambda i: f"  v_mul_f32 v{16+i%32}, v{64+i%16}, v{48+i%16}\n",
 'add1': lambda i: f"  v_add_f32 v{16+i%32}, 1.0, v{48+i%16}\n",
 'addlit': lambda i: f"  v_add_f32 v{16+i%32}, 0x3fc00001, v{48+i%16}\n",
 'andvv': lambda i: f"  v_and_b32 v{16+i%32}, v{64+i%16}, v{48+i%16}\n",
 'lshl': lambda i: f"  v_lshlrev_b32 v{16+i%32}, 16, v{48+i%16}\n",
 'mov': lambda i: f"  v_mov_b32 v{16+i%32}, v{48+i%16}\n",
 'cvtbf': lambda i: f"  v_cvt_f32_bf16 v{16+i%32}, v{48+i%16}\n",
 'perm': lambda i: f"  v_perm_b32 v{16+i%32}, v{48+i%16}, v{64+i%16}, v{80}\n",
 'fmacvv': lambda i: f"  v_fmac_f32 v{16+i%32}, v{64+i%16}, v{48+i%16}\n",
 'fmavkk': lambda i: f"  v_fma_f32 v{16+i%32}, v{48+i%16}, v80, v80\n",
 'fmamk': lambda i: f"  v_fmamk_f32 v{16+i%32}, v{48+i%16}, 0x3fc00001, v{64+i%16}\n",
 'exp': lambda i: f"  v_exp_f32 v{16+i%32}, v{48+i%16}\n",
}
for k, f in ops.items():
    if k in ('exp',): continue
    tests[f'op_{k}_8'] = wrap(PRO + I + START + loop('L', rep(f), 10) + END, 512)
    tests[f'op_{k}_m'] = wrap(PRO + I + START + roles(mfma_body(40), 10, rep(f), 10) + END, 512)
tests['exp_mulvv'] = wrap(PRO + I + START + roles(rep(ops['exp']), 10, rep(ops['mulvv']), 10) + END, 512)
tests['mulvv_exp'] = wrap(PRO + I + START + roles(rep(ops['mulvv']), 10, rep(ops['exp']), 10) + END, 512)
for n in (6, 8, 10, 12, 14):
    body = "".join(mfma(128 + 16 * (j % 5)) + "".join(ops['mulvv'](j * n + i) for i in range(n)) for j in range(20))
    tests[f'mm{n}_8'] = wrap(PRO + I + START + loop('L', body, 10) + END, 512)
def silu_v(src, tmp, dst, K=110, KAP=111):
    st = [[f"  v_fmac_f32 v{tmp+i}, v{KAP}, v{src+i}\n" for i in range(16)],
          [f"  v_exp_f32 v{src+i}, v{tmp+i}\n" for i in range(16)],
          [f"  v_fma_f32 v{src+i}, v{src+i}, v{K}, v{K}\n" for i in range(16)],
          [f"  v_rcp_f32 v{src+i}, v{src+i}\n" for i in range(16)],
          [f"  v_mul_f32 v{tmp+i}, v{tmp+i}, v{src+i}\n" for i in range(16)],
          [f"  v_cvt_pk_bf16_f32 v{dst+i//2}, v{tmp+i-1}, v{tmp+i}\n" if i % 2 else "" for i in range(16)]]
    ops_ = []
    for t in range(16 + 2 * 5):
        for s in range(6):
            i = t - 2 * s
            if 0 <= i < 16 and st[s][i]: ops_.append(st[s][i])
    return ops_
sv = silu_v(16, 48, 80) + silu_v(32, 64, 88)
tests['siluv_4'] = wrap(PRO + I + START + loop('L', "".join(sv), 25) + END, 256)
tests['siluv_8'] = wrap(PRO + I + START + loop('L', "".join(sv), 25) + END, 512)
for nm in (16, 24, 32, 40):
    tests[f'mixv{nm}_8'] = wrap(PRO + I + START + loop('L', interleave([mfma(128 + 16 * (i % 5)) for i in range(nm)], sv), 25) + END, 512)
for nm in (32, 48, 64, 80):
    tests[f'mixv16_{nm}_8'] = wrap(PRO + I + START + loop('L', interleave([mfma16(128 + 4 * (i % 20)) for i in range(nm)], sv), 25) + END, 512)
if __name__ == "__main__":
    for k, v in tests.items():
        open(f"t_{k}.s", "w").write(v)
    print(" ".join(f"bench/t_{k}.s" for k in tests))
```

```python
import mbgen40 as g
from mbgen40 import *
tests.clear()
g.I = g.I + """  s_mov_b32 s28, s4
  s_mov_b32 s29, s5
  s_add_u32 s28, s28, 0x100000
  s_addc_u32 s29, s29, 0
  s_mov_b32 s34, 0x8000000
  s_mov_b32 s35, 0x20000
  s_mov_b32 s32, s28
  s_mov_b32 s33, s29
  s_lshl_b32 s38, s2, 8
  v_lshrrev_b32 v6, 4, v0
  v_lshlrev_b32 v6, 17, v6
  v_and_b32 v7, 15, v0
  v_lshl_add_u32 v6, v7, 3, v6
"""
def pat(p, reps):
    from collections import defaultdict
    c = defaultdict(int); o = []
    for r in range(reps):
        for ch in p:
            i = c[ch]; c[ch] += 1
            if ch == 'M': o.append(m16(i))
            elif ch == 'T': o.append(f"  v_exp_f32 v{16+i%16}, v{32+i%16}\n")
            elif ch == 'P': o.append(f"  v_pk_mul_f32 v[{48+2*(i%8)}:{49+2*(i%8)}], v[{64+2*(i%8)}:{65+2*(i%8)}], s[30:31]\n")
            elif ch == 'c': o.append(f"  v_cvt_pk_bf16_f32 v{96+i%8}, v{88+i%8}, v{89+i%8}\n")
            elif ch == 'r': o.append(rdtr(40)[i % 40])
            elif ch == 'R': o.append(f"  ds_read_b128 a[{200+4*(i%12)}:{203+4*(i%12)}], v1 offset:{(i*1024)%65536}\n")
            elif ch == 'W': o.append(wr(12)[i % 12])
            elif ch == 'w': o.append("  s_waitcnt lgkmcnt(8)\n")
            elif ch == 's': o.append(f"  s_add_u32 s40, s38, {(i % 4) << 15}\n")
            elif ch == 'S': o.append(f"  buffer_store_dwordx2 v[112:113], v6, s[32:35], s40 offen sc1 nt\n")
            elif ch == 'D': o.append(dma0(8)[i % 8])
            elif ch == 'B': o.append("  s_barrier\n")
    return [("".join(o))]
MT = "MT" * 9
for p in ("MT", "MRT", "MR", "MRRT", "MrrT", "Mrr", "MrrrrT", "Mrrcc", "MWT", "MW", "Mcc", "MsT", "MST", "MS", "MScc", "MDT", "MDsT", "MD", "MDs", "MwT", "MwrrT", "MB", "MBT", "MwBT", "MsrrT", "MTTcPPPPPPPPPPPP", "MTTPPPPPPPPPPPP"):
    T('z_' + p, pat("s" + p + MT, 10), tail="  s_waitcnt lgkmcnt(6) vmcnt(30)\n")
for k, v in tests.items(): open(f"u_{k}.s", "w").write(v)
print(" ".join(f"mb/u_{k}.s" for k in tests))
print(", ".join(f'"mb/u_{k}.s"' for k in tests))
```

```python
import mbgen50 as z
from mbgen50 import *
import mbgen40 as g
tests.clear()
g.I += """  v_lshrrev_b32 v8, 3, v0
  v_mul_u32_u24 v8, 640, v8
  v_and_b32 v9, 7, v0
  v_lshl_add_u32 v8, v9, 4, v8
"""
def pat2(p, reps):
    t = pat(p, reps)[0].split("\n"); d = 0; o = []
    for l in t:
        if "buffer_load" in l:
            o.append(f"  buffer_load_dwordx4 v8, s[24:27], s{64 + d % 10} offen offset:{128 * ((d // 10) % 5)} lds"); d += 1
        else: o.append(l)
    return ["\n".join(o)]
g.I += "".join(f"  s_mov_b32 s{64+j}, {20480*j}\n" for j in range(10))
for p in ("MD" + "MT" * 9, "MD" + "MT" * 5, "MD" + "MT" * 4, "MD" + "MT" * 3, "MDMrrTMrrTMrrT", "MDMrrTMrrTMTMT", "MMrrTMrrTMrrT", "MDMrrTMrrTMrrTMTMT", "MDMTMTMTMrrTMrrT", "MDMDMTMTMTMTMTMTMTMTMTMT", "MDMrrMrrMrr", "MDMrrMrrMrrM", "MMrrMrrMrrM"):
    T('y_' + p, pat2(p, 50), tail="  s_waitcnt lgkmcnt(6) vmcnt(30)\n")
for k, v in tests.items(): open(f"u_{k}.s", "w").write(v)
print(" ".join(f"mb/u_{k}.s" for k in tests))
print(", ".join(f'"mb/u_{k}.s"' for k in tests))
```

```python
import mbgen53 as y
from mbgen53 import *
tests.clear()
for p in ("TTTT", "TcTc", "TPTP", "cccc", "PPPP", "MTcMTc", "McTMcT", "MTMT", "TrTr", "TsTs", "crcr", "MTrMTr", "MrTMrT"):
    T('v_' + p, pat2(p, 20), tail="  s_waitcnt lgkmcnt(6) vmcnt(30)\n")
for k, v in tests.items(): open(f"u_{k}.s", "w").write(v)
print(" ".join(f"mb/u_{k}.s" for k in tests)); print(", ".join(f'"mb/u_{k}.s"' for k in tests))
```
